```python
import torch

def _softmax(x, axis=-1):
    return torch.softmax(x, dim=axis)
def _gelu(x):
    return torch.nn.functional.gelu(x, approximate="tanh")
def _silu(x):
    return torch.nn.functional.silu(x)
def _sigmoid(x):
    return torch.sigmoid(x)
def _layernorm(x, axis=-1, eps=1e-5):
    m = x.mean(dim=axis, keepdim=True)
    v = x.var(dim=axis, keepdim=True, unbiased=False)
    return (x - m) / torch.sqrt(v + eps)
def _scatter_add(tgt, idx, src, axis=0):
    return tgt.clone().index_add_(axis, idx, src)
def _segment_sum(src, seg, n):
    out = torch.zeros((n,) + src.shape[1:], dtype=src.dtype)
    return out.index_add_(0, seg, src)
def _pad(x, pw):
    flat = tuple(v for pair in reversed(pw) for v in pair)
    return torch.nn.functional.pad(x, flat)

kernel_name = 'standalone__mixer_s_mlp__prompt'

def setup_inputs():

    _w = (lambda a: (lambda t: t.to(torch.bfloat16) if t.is_floating_point() else t)(torch.as_tensor(a)))
    B, S, D, F = 1, 2048, 512, 1792
    return {
        "x":  _w((lambda *s: torch.randn(*s, dtype=torch.bfloat16) * 0.4)(B, S, D)),
        "w1": _w((lambda *s: torch.randn(*s, dtype=torch.bfloat16) * 3.2)(D, D) * (D ** -0.5)),
        "w2": _w((lambda *s: torch.randn(*s, dtype=torch.bfloat16) * 3.2)(D, D) * (D ** -0.5)),
        "w3": _w((lambda *s: torch.randn(*s, dtype=torch.bfloat16) * 3.2)(D, F) * (D ** -0.5)),
        "w4": _w((lambda *s: torch.randn(*s, dtype=torch.bfloat16) * 0.8)(F, D) * (F ** -0.5)),
    }

def reference(x, w1, w2, w3, w4):
    B, S, D = x.shape
    h = _gelu(_layernorm(x, axis=-1) @ w1)
    c = D // 4
    g0 = _pad(h[:, :, 0*c:1*c], ((0, 0), (1, 0), (0, 0)))[:, :S, :]
    g1 = _pad(h[:, :, 1*c:2*c], ((0, 0), (0, 1), (0, 0)))[:, 1:, :]
    g2 = _pad(h[:, :, 2*c:3*c], ((0, 0), (2, 0), (0, 0)))[:, :S, :]
    g3 = _pad(h[:, :, 3*c:   ], ((0, 0), (0, 2), (0, 0)))[:, 2:, :]
    hs = torch.concatenate([g0, g1, g2, g3], axis=-1) @ w2
    x1 = x + hs
    h2 = _gelu(_layernorm(x1, axis=-1) @ w3) @ w4
    return x1 + h2
```

```python
import sys, struct

S, D, F = 2048, 512, 1792
WS_G = 0
WS_X1 = 2 << 20
WS_H3 = 4 << 20
WS_TS = 16 << 20

STAMP = False


def f32(x):
    return struct.unpack("<I", struct.pack("<f", x))[0]


C1 = -2.0 * 0.7978845608028654 * 1.4426950408889634
C2 = C1 * 0.044715


class Asm:
    def __init__(self):
        self.l = []

    def __call__(self, s):
        self.l.append("    " + s)

    def label(self, s):
        self.l.append(s + ":")

    def raw(self, s):
        self.l.append(s)

    def text(self):
        return "\n".join(self.l) + "\n"


def vr(b, n=1, p="v"):
    return f"{p}{b}" if n == 1 else f"{p}[{b}:{b+n-1}]"


def ar(b, n=1):
    return vr(b, n, "a")


def sr(b, n=1):
    return vr(b, n, "s")


S_X, S_W1, S_W2, S_W3, S_W4, S_OUT, S_DBG, S_WS = 16, 18, 20, 22, 24, 26, 28, 30
SRD_A, SRD_W, SRD_O, SRD_R = 32, 36, 40, 44
S_WAVE = 48
S_R0 = 49
S_N0 = 50
S_T0, S_T1, S_T2, S_T3 = 52, 53, 54, 55
S_M = 56
S_WOFF = 57
S_XOFF = 58
S_IT = 59
S_B0, S_B1 = 60, 61
S_C2 = 62
S_TS = 64


def make_srd(a, srd, ptr, off, nbytes):
    if off:
        a(f"s_add_u32 {sr(srd)}, {sr(ptr)}, 0x{off:x}")
        a(f"s_addc_u32 {sr(srd+1)}, {sr(ptr+1)}, 0")
    else:
        a(f"s_mov_b32 {sr(srd)}, {sr(ptr)}")
        a(f"s_mov_b32 {sr(srd+1)}, {sr(ptr+1)}")
    a(f"s_mov_b32 {sr(srd+2)}, 0x{nbytes:x}")
    a(f"s_mov_b32 {sr(srd+3)}, 0x00020000")


def header(a, name):
    a.raw(".text")
    a.raw(f".globl {name}")
    a.raw(".p2align 8")
    a.raw(f".type {name},@function")
    a.label(name)


def descriptor(a, name, nv, na, nsg=96):
    acc = (nv + 3) // 4 * 4
    a.raw('.section .rodata,"a"')
    a.raw(".p2align 6")
    a.raw(f".amdhsa_kernel {name}")
    a.raw(f"  .amdhsa_next_free_vgpr {acc + na}")
    a.raw(f"  .amdhsa_next_free_sgpr {nsg}")
    a.raw(f"  .amdhsa_accum_offset {acc}")
    a.raw("  .amdhsa_group_segment_fixed_size 0")
    a.raw("  .amdhsa_kernarg_size 64")
    a.raw("  .amdhsa_user_sgpr_count 2")
    a.raw("  .amdhsa_user_sgpr_kernarg_segment_ptr 1")
    a.raw("  .amdhsa_system_sgpr_workgroup_id_x 1")
    a.raw(".end_amdhsa_kernel")


def stamp(a, idx):
    if STAMP:
        a(f"s_memrealtime {sr(S_TS + 2*idx, 2)}")


def stamp_flush(a, kidx, n, vtmp):
    if not STAMP:
        return
    a("s_waitcnt lgkmcnt(0)")
    make_srd(a, SRD_R, S_WS, WS_TS, 1 << 20)
    a(f"s_lshl_b32 {sr(S_T0)}, s2, 8")
    a(f"s_lshl_b32 {sr(S_T1)}, {sr(S_WAVE)}, 6")
    a(f"s_add_u32 {sr(S_T0)}, {sr(S_T0)}, {sr(S_T1)}")
    a(f"s_add_u32 {sr(S_T0)}, {sr(S_T0)}, 0x{kidx*65536:x}")
    a(f"v_mov_b32 {vr(vtmp)}, {sr(S_T0)}")
    for i in range(n):
        a(f"v_mov_b32 {vr(vtmp+1)}, {sr(S_TS+2*i)}")
        a(f"buffer_store_dword {vr(vtmp+1)}, {vr(vtmp)}, {sr(SRD_R,4)}, 0 offen offset:{4*i}")
        a("s_nop 1")


def gelu_pairs(a, pairs, tmp, vC1):
    n = len(pairs)
    T = [tmp + 2 * i for i in range(n)]
    for p, t in zip(pairs, T):
        a(f"v_pk_mul_f32 {vr(t,2)}, {vr(p,2)}, {vr(p,2)}")
    for p, t in zip(pairs, T):
        a(f"v_pk_fma_f32 {vr(t,2)}, {vr(t,2)}, {sr(S_C2,2)}, {vr(vC1,2)}")
    for p, t in zip(pairs, T):
        a(f"v_pk_mul_f32 {vr(t,2)}, {vr(t,2)}, {vr(p,2)}")
    for p, t in zip(pairs, T):
        a(f"v_exp_f32 {vr(t)}, {vr(t)}")
        a(f"v_exp_f32 {vr(t+1)}, {vr(t+1)}")
    a("s_nop 0")
    for p, t in zip(pairs, T):
        a(f"v_pk_add_f32 {vr(t,2)}, {vr(t,2)}, 1.0 op_sel_hi:[1,0]")
    for p, t in zip(pairs, T):
        a(f"v_rcp_f32 {vr(t)}, {vr(t)}")
        a(f"v_rcp_f32 {vr(t+1)}, {vr(t+1)}")
    a("s_nop 0")
    for p, t in zip(pairs, T):
        a(f"v_pk_mul_f32 {vr(p,2)}, {vr(p,2)}, {vr(t,2)}")


def common_prologue(a, name, nwg):
    header(a, name)
    a(f"s_cmp_ge_u32 s2, {nwg}")
    a(f"s_cbranch_scc1 {name}_end")
    a(f"s_load_dwordx16 {sr(16,16)}, s[0:1], 0")
    stamp(a, 0)
    a("v_lshrrev_b32 v1, 6, v0")
    a("v_and_b32 v0, 63, v0")
    a(f"v_readfirstlane_b32 {sr(S_WAVE)}, v1")


def upfront_kernel(a, name, kidx, ln, XT, NTt, a_ptr, a_off, w_ptr, w_pitch, w_bytes, o_off, o_pitch, o_bytes,
                   shift, res):
    K = 512
    NSL = 8
    wl = 128 if NTt == 4 else 256
    slab = 64 * wl
    ndma = slab // 1024 // 4
    rows_per_dma = 1024 // wl
    lanes_per_row = wl // 16
    MT = 64 * XT
    NT = 16 * NTt
    lds_cs = NSL * slab
    lds_total = lds_cs + 512
    nv = 16
    vX = nv; nv += XT
    vW = nv; nv += ndma
    vT = nv; nv += NTt
    vO = nv; nv += XT
    nv = (nv + 3) // 4 * 4
    vOnes = nv; nv += 4
    vC1 = nv; nv += 2
    vCsA = nv; nv += 2
    vAcc = nv; nv += XT * NTt * 4
    vRs = nv; nv += XT * 4
    vSq = nv; nv += XT * 4
    vCs = nv; nv += 8
    vWb = nv; nv += 2 * NTt * 4
    vRes = nv; nv += NTt * 2
    na = XT * 16 * 4

    def acc(t, nt):
        return vAcc + (t * NTt + nt) * 4

    def xf(t, z):
        return (t * 16 + z) * 4

    def wb(z, nt):
        return vWb + ((z & 1) * NTt + nt) * 4

    common_prologue(a, name, 256)
    a(f"s_and_b32 {sr(S_T0)}, s2, 7")
    a(f"s_lshr_b32 {sr(S_T1)}, s2, 3")
    if XT == 1:
        a(f"s_lshr_b32 {sr(S_T2)}, {sr(S_T1)}, 3")
        a(f"s_lshl_b32 {sr(S_T0)}, {sr(S_T0)}, 2")
        a(f"s_add_u32 {sr(S_T0)}, {sr(S_T0)}, {sr(S_T2)}")
        a(f"s_lshl_b32 {sr(S_R0)}, {sr(S_T0)}, 6")
        a(f"s_and_b32 {sr(S_T1)}, {sr(S_T1)}, 7")
        a(f"s_lshl_b32 {sr(S_N0)}, {sr(S_T1)}, 6")
    else:
        a(f"s_lshr_b32 {sr(S_T2)}, {sr(S_T1)}, 4")
        a(f"s_lshl_b32 {sr(S_T0)}, {sr(S_T0)}, 1")
        a(f"s_add_u32 {sr(S_T0)}, {sr(S_T0)}, {sr(S_T2)}")
        a(f"s_lshl_b32 {sr(S_R0)}, {sr(S_T0)}, 7")
        a(f"s_and_b32 {sr(S_T1)}, {sr(S_T1)}, 15")
        a(f"s_mul_i32 {sr(S_N0)}, {sr(S_T1)}, {NT}")
    a("v_and_b32 v2, 15, v0")
    a("v_lshrrev_b32 v3, 4, v0")
    a(f"s_mul_i32 {sr(S_T2)}, {sr(S_WAVE)}, {16*XT}")
    a(f"s_add_u32 {sr(S_T2)}, {sr(S_T2)}, {sr(S_R0)}")
    if shift:
        a(f"s_lshr_b32 {sr(S_T3)}, {sr(S_T1)}, 1")
        a(f"s_lshr_b32 {sr(S_T0)}, {sr(S_T3)}, 1")
        a(f"s_add_u32 {sr(S_T0)}, {sr(S_T0)}, 1")
        a(f"s_and_b32 {sr(S_T3)}, {sr(S_T3)}, 1")
        a(f"s_cmp_eq_u32 {sr(S_T3)}, 1")
        a(f"s_sub_u32 {sr(S_T3)}, 0, {sr(S_T0)}")
        a(f"s_lshr_b32 {sr(S_T3+0)}, {sr(S_T3)}, 0") if False else None
        a(f"s_lshr_b32 {sr(S_IT)}, {sr(S_T1)}, 1")
        a(f"s_and_b32 {sr(S_IT)}, {sr(S_IT)}, 1")
        a(f"s_cselect_b32 {sr(S_T3)}, {sr(S_T0)}, {sr(S_T3)}")
    else:
        a(f"s_mov_b32 {sr(S_T3)}, 0")
    for t in range(XT):
        a(f"v_add_u32 v4, {sr(S_T2)}, v2")
        if t:
            a(f"v_add_u32 v4, {16*t}, v4")
        a(f"s_mov_b32 {sr(S_T0)}, {o_pitch}")
        a(f"v_mul_lo_u32 v5, v4, {sr(S_T0)}")
        a(f"v_lshlrev_b32 v6, 3, v3")
        a(f"v_add_u32 v5, v5, v6")
        a(f"s_lshl_b32 {sr(S_T0)}, {sr(S_N0)}, 1")
        a(f"v_add_u32 {vr(vO+t)}, {sr(S_T0)}, v5")
        a(f"v_add_u32 v4, {sr(S_T3)}, v4")
        a(f"v_lshlrev_b32 v5, 10, v4")
        a(f"v_lshl_add_u32 v5, v3, 4, v5")
        a(f"v_cmp_gt_i32 vcc, 0, v4")
        a(f"v_mov_b32 v6, 0x80000000")
        a("s_nop 1")
        a(f"v_cndmask_b32 {vr(vX+t)}, v5, v6, vcc")
    if wl == 128:
        a("v_lshrrev_b32 v4, 3, v0")
        a("v_and_b32 v5, 7, v0")
        a("v_bfe_u32 v6, v0, 4, 1")
        a("v_lshlrev_b32 v6, 1, v6")
        a("v_xor_b32 v5, v5, v6")
        for o in range(2):
            a(f"v_xor_b32 v7, {4*o}, v5")
            a(f"s_lshl_b32 {sr(S_T0)}, {sr(S_WAVE)}, 4")
            a(f"s_add_u32 {sr(S_T0)}, {sr(S_T0)}, {8*o}")
            a(f"v_add_u32 v8, {sr(S_T0)}, v4")
            a(f"s_mov_b32 {sr(S_T0)}, {w_pitch}")
            a(f"v_mul_lo_u32 v8, v8, {sr(S_T0)}")
            a(f"v_lshl_add_u32 v8, v7, 4, v8")
            a(f"s_lshl_b32 {sr(S_T0)}, {sr(S_N0)}, 1")
            a(f"v_add_u32 {vr(vW+o)}, {sr(S_T0)}, v8")
    else:
        a("v_lshlrev_b32 v6, 1, v3")
        a("v_xor_b32 v5, v2, v6")
        for o in range(4):
            a(f"v_xor_b32 v7, {8*(o>>1)}, v5")
            a(f"s_lshl_b32 {sr(S_T0)}, {sr(S_WAVE)}, 4")
            a(f"s_add_u32 {sr(S_T0)}, {sr(S_T0)}, {4*o}")
            a(f"v_add_u32 v8, {sr(S_T0)}, v3")
            a(f"s_mov_b32 {sr(S_T0)}, {w_pitch}")
            a(f"v_mul_lo_u32 v8, v8, {sr(S_T0)}")
            a(f"v_lshl_add_u32 v8, v7, 4, v8")
            a(f"s_lshl_b32 {sr(S_T0)}, {sr(S_N0)}, 1")
            a(f"v_add_u32 v8, {sr(S_T0)}, v8")
            a(f"v_cmp_gt_u32 vcc, {2*NTt}, v7")
            a(f"v_mov_b32 v9, 0x80000000")
            a("s_nop 1")
            a(f"v_cndmask_b32 {vr(vW+o)}, v9, v8, vcc")
    a("v_lshrrev_b32 v4, 2, v2")
    a("v_and_b32 v5, 3, v2")
    a("v_lshl_add_u32 v6, v3, 3, v4")
    a(f"v_lshlrev_b32 v6, {7 if wl == 128 else 8}, v6")
    a("v_lshl_add_u32 v6, v5, 3, v6")
    a("v_and_b32 v7, 1, v3")
    if wl == 128:
        a("v_lshrrev_b32 v8, 1, v4")
        a("v_lshl_or_b32 v8, v7, 1, v8")
    else:
        a("v_lshl_or_b32 v8, v7, 2, v4")
    for nt in range(NTt):
        a(f"v_xor_b32 v9, {nt}, v8")
        a(f"v_lshl_add_u32 {vr(vT+nt)}, v9, 5, v6")
    if ln:
        for i in range(4):
            a(f"v_mov_b32 {vr(vOnes+i)}, 0x3f803f80")
        a(f"v_mov_b32 {vr(vC1)}, 0x{f32(C1):x}")
        a(f"v_mov_b32 {vr(vC1+1)}, 0x{f32(C1):x}")
        a(f"s_mov_b32 {sr(S_C2)}, 0x{f32(C2):x}")
        a(f"s_mov_b32 {sr(S_C2+1)}, 0x{f32(C2):x}")
        a(f"v_lshlrev_b32 v4, 4, v3")
        a(f"v_add_u32 {vr(vCsA)}, 0x{lds_cs:x}, v4")
        a(f"s_lshl_b32 {sr(S_T0)}, {sr(S_WAVE)}, 6")
        a(f"v_add_u32 {vr(vCsA+1)}, {sr(S_T0)}, {vr(vCsA)}")
    a(f"s_mul_i32 {sr(S_M)}, {sr(S_WAVE)}, {ndma*1024}")
    a("s_waitcnt lgkmcnt(0)")
    make_srd(a, SRD_A, a_ptr, a_off, S * D * 2)
    make_srd(a, SRD_W, w_ptr, 0, w_bytes)
    make_srd(a, SRD_O, S_WS, o_off, o_bytes)
    if res:
        make_srd(a, SRD_R, S_X, 0, S * D * 2)
    stamp(a, 1)
    per_slab = ndma + 2 * XT
    nres = NTt if res else 0

    def issue_slab(s):
        a(f"s_mov_b32 {sr(S_WOFF)}, 0x{s*64*w_pitch:x}")
        for o in range(ndma):
            a(f"s_add_u32 m0, {sr(S_M)}, 0x{s*slab + o*1024:x}")
            a("s_nop 0")
            a(f"buffer_load_dwordx4 {vr(vW+o)}, {sr(SRD_W,4)}, {sr(S_WOFF)} offen lds")
        for kk in range(2):
            for t in range(XT):
                z = 2 * s + kk
                a(f"buffer_load_dwordx4 {ar(xf(t,z),4)}, {vr(vX+t)}, {sr(SRD_A,4)}, 0 offen offset:{z*64}")

    early = NSL if per_slab * NSL + nres <= 60 else NSL - 1
    for s in range(early):
        issue_slab(s)
    issued = per_slab * early
    if res:
        for nt in range(NTt):
            a(f"buffer_load_dwordx2 {vr(vRes+2*nt,2)}, {vr(vO)}, {sr(SRD_R,4)}, 0 offen offset:{32*nt}")
        issued += NTt
    stamp(a, 2)

    state = {"issued": issued, "late": early}

    def wait_slab(s):
        n = state["issued"] - per_slab * (s + 1)
        if s >= early:
            n = state["issued"] - per_slab * (s + 1) - nres
        a(f"s_waitcnt vmcnt({n})")
        a("s_barrier")
        if state["late"] < NSL:
            issue_slab(state["late"])
            state["late"] += 1
            state["issued"] += per_slab

    def reads(z, nt):
        s, kk = z >> 1, z & 1
        sl = s
        if wl == 256 and s >= 4:
            sl = s - 4
        for h in range(2):
            off = sl * slab + (32 * kk + 4 * h) * wl
            a(f"ds_read_b64_tr_b16 {vr(wb(z,nt)+2*h,2)}, {vr(vT+nt)} offset:{off}")

    wait_slab(0)
    stamp(a, 3)
    for nt in range(NTt):
        reads(0, nt)
    for z in range(16):
        if z + 1 < 16 and (z + 1) % 2 == 0:
            wait_slab((z + 1) // 2)
        for nt in range(NTt):
            if z + 1 < 16:
                if wl == 256 and z + 1 == 8:
                    a(f"v_add_u32 {vr(vT+nt)}, 0x10000, {vr(vT+nt)}")
                reads(z + 1, nt)
                a(f"s_waitcnt lgkmcnt({2*NTt})")
            else:
                a(f"s_waitcnt lgkmcnt({2*(NTt-1-nt)})")
            for t in range(XT):
                c = "0" if z == 0 else vr(acc(t, nt), 4)
                a(f"v_mfma_f32_16x16x32_bf16 {vr(acc(t,nt),4)}, {vr(wb(z,nt),4)}, {ar(xf(t,z),4)}, {c}")
            if ln:
                pass
        if ln:
            for t in range(XT):
                c = "0" if z == 0 else vr(vRs + 4 * t, 4)
                a(f"v_mfma_f32_16x16x32_bf16 {vr(vRs+4*t,4)}, {vr(vOnes,4)}, {ar(xf(t,z),4)}, {c}")
                c = "0" if z == 0 else vr(vSq + 4 * t, 4)
                a(f"v_mfma_f32_16x16x32_bf16 {vr(vSq+4*t,4)}, {ar(xf(t,z),4)}, {ar(xf(t,z),4)}, {c}")
            lab = f"{name}_cs{z}"
            for w in range(4):
                if w < 3:
                    a(f"s_cmp_lg_u32 {sr(S_WAVE)}, {w}")
                    a(f"s_cbranch_scc1 {lab}_{w+1}")
                for ci, nt in enumerate([w, w + 4]):
                    if nt < NTt:
                        c = "0" if z == 0 else vr(vCs + 4 * ci, 4)
                        a(f"v_mfma_f32_16x16x32_bf16 {vr(vCs+4*ci,4)}, {vr(wb(z,nt),4)}, {vr(vOnes,4)}, {c}")
                if w < 3:
                    a(f"s_branch {lab}_e")
                    a.label(f"{lab}_{w+1}")
            a.label(f"{lab}_e")
    stamp(a, 4)
    a("s_nop 7")
    a("s_nop 3")
    if ln:
        a(f"ds_write_b128 {vr(vCsA+1)}, {vr(vCs,4)}")
        if NTt > 4:
            a(f"ds_write_b128 {vr(vCsA+1)}, {vr(vCs+4,4)} offset:256")
        a("v_and_b32 v4, 3, v0")
        a("v_lshrrev_b32 v5, 2, v2")
        a("v_lshl_add_u32 v5, v5, 4, v2")
        a("v_lshlrev_b32 v5, 2, v5")
        for t in range(XT):
            a(f"v_mov_b32 v6, {vr(vSq+4*t)}")
            for r in range(1, 4):
                a(f"v_cmp_eq_u32 vcc, {r}, v4")
                a("s_nop 1")
                a(f"v_cndmask_b32 v6, v6, {vr(vSq+4*t+r)}, vcc")
            a(f"ds_bpermute_b32 {vr(vSq+4*t)}, v5, v6")
        a("s_waitcnt lgkmcnt(0)")
        a("s_barrier")
        for nt in range(NTt):
            a(f"ds_read_b128 {vr(vWb+4*nt,4)}, {vr(vCsA)} offset:{64*nt}")
        for t in range(XT):
            mean, sq = vRs + 4 * t, vSq + 4 * t
            a(f"v_mul_f32 {vr(mean)}, 0x{f32(1.0/512):x}, {vr(mean)}")
            a(f"v_mul_f32 {vr(sq)}, 0x{f32(1.0/512):x}, {vr(sq)}")
            a(f"v_fma_f32 {vr(sq)}, -{vr(mean)}, {vr(mean)}, {vr(sq)}")
            a(f"v_max_f32 {vr(sq)}, 0, {vr(sq)}")
            a(f"v_add_f32 {vr(sq)}, 0x{f32(1e-5):x}, {vr(sq)}")
            a(f"v_rsq_f32 {vr(sq)}, {vr(sq)}")
            a("s_nop 0")
            a(f"v_mov_b32 {vr(sq+1)}, {vr(sq)}")
            a(f"v_mul_f32 {vr(mean)}, {vr(mean)}, {vr(sq)}")
            a(f"v_sub_f32 {vr(mean)}, 0, {vr(mean)}")
            a(f"v_mov_b32 {vr(mean+1)}, {vr(mean)}")
        a("s_waitcnt lgkmcnt(0)")
        tmp = vWb + 4 * NTt
        for t in range(XT):
            mean, sq = vRs + 4 * t, vSq + 4 * t
            for nt in range(NTt):
                for hh in range(2):
                    p = acc(t, nt) + 2 * hh
                    a(f"v_pk_mul_f32 {vr(p,2)}, {vr(p,2)}, {vr(sq,2)}")
                    a(f"v_pk_fma_f32 {vr(p,2)}, {vr(vWb+4*nt+2*hh,2)}, {vr(mean,2)}, {vr(p,2)}")
            pairs = [acc(t, nt) + 2 * hh for nt in range(NTt) for hh in range(2)]
            gelu_pairs(a, pairs, tmp, vC1)
            for nt in range(NTt):
                p = acc(t, nt)
                a(f"v_cvt_pk_bf16_f32 {vr(p)}, {vr(p)}, {vr(p+1)}")
                a(f"v_cvt_pk_bf16_f32 {vr(p+1)}, {vr(p+2)}, {vr(p+3)}")
                a(f"buffer_store_dwordx2 {vr(p,2)}, {vr(vO+t)}, {sr(SRD_O,4)}, 0 offen offset:{32*nt}")
    else:
        a("s_waitcnt vmcnt(0)")
        res_epilogue(a, NTt, vRes, lambda nt: acc(0, nt), vWb, vO, SRD_O)
    stamp(a, 5)
    stamp_flush(a, kidx, 6, 4)
    a.label(f"{name}_end")
    a("s_endpgm")
    descriptor(a, name, nv, na)
    return lds_total


def res_epilogue(a, NTt, vRes, acc, tmp, vO, srd):
    for nt in range(NTt):
        p = acc(nt)
        t = tmp + 4 * nt
        a(f"v_lshlrev_b32 {vr(t)}, 16, {vr(vRes+2*nt)}")
        a(f"v_and_b32 {vr(t+1)}, 0xffff0000, {vr(vRes+2*nt)}")
        a(f"v_lshlrev_b32 {vr(t+2)}, 16, {vr(vRes+2*nt+1)}")
        a(f"v_and_b32 {vr(t+3)}, 0xffff0000, {vr(vRes+2*nt+1)}")
        a(f"v_pk_add_f32 {vr(p,2)}, {vr(p,2)}, {vr(t,2)}")
        a(f"v_pk_add_f32 {vr(p+2,2)}, {vr(p+2,2)}, {vr(t+2,2)}")
        a(f"v_cvt_pk_bf16_f32 {vr(p)}, {vr(p)}, {vr(p+1)}")
        a(f"v_cvt_pk_bf16_f32 {vr(p+1)}, {vr(p+2)}, {vr(p+3)}")
        a(f"buffer_store_dwordx2 {vr(p,2)}, {vr(vO)}, {sr(srd,4)}, 0 offen offset:{32*nt}")


def ring_kernel(a, name, kidx):
    NTt = 4
    U = 7
    NIT = 4
    wl = 128
    slab = 8192
    w_pitch = 1024
    a_pitch = F * 2
    nv = 16
    vX = nv; nv += 1
    vW = nv; nv += 2
    vT = nv; nv += 4
    vO = nv; nv += 1
    nv = (nv + 3) // 4 * 4
    vAcc = nv; nv += 16
    vWb = nv; nv += 32
    vRes = nv; nv += 8
    na = U * 2 * 4

    def acc(nt):
        return vAcc + nt * 4

    def xf(u, kk):
        return (u * 2 + kk) * 4

    def wb(z, nt):
        return vWb + ((z & 1) * NTt + nt) * 4

    common_prologue(a, name, 256)
    a(f"s_and_b32 {sr(S_T0)}, s2, 7")
    a(f"s_lshr_b32 {sr(S_T1)}, s2, 3")
    a(f"s_lshr_b32 {sr(S_T2)}, {sr(S_T1)}, 3")
    a(f"s_lshl_b32 {sr(S_T0)}, {sr(S_T0)}, 2")
    a(f"s_add_u32 {sr(S_T0)}, {sr(S_T0)}, {sr(S_T2)}")
    a(f"s_lshl_b32 {sr(S_R0)}, {sr(S_T0)}, 6")
    a(f"s_and_b32 {sr(S_T1)}, {sr(S_T1)}, 7")
    a(f"s_lshl_b32 {sr(S_N0)}, {sr(S_T1)}, 6")
    a("v_and_b32 v2, 15, v0")
    a("v_lshrrev_b32 v3, 4, v0")
    a(f"s_lshl_b32 {sr(S_T2)}, {sr(S_WAVE)}, 4")
    a(f"s_add_u32 {sr(S_T2)}, {sr(S_T2)}, {sr(S_R0)}")
    a(f"v_add_u32 v4, {sr(S_T2)}, v2")
    a(f"v_lshlrev_b32 v5, 10, v4")
    a(f"v_lshl_add_u32 v5, v3, 3, v5")
    a(f"s_lshl_b32 {sr(S_T0)}, {sr(S_N0)}, 1")
    a(f"v_add_u32 {vr(vO)}, {sr(S_T0)}, v5")
    a(f"s_mov_b32 {sr(S_T0)}, {a_pitch}")
    a(f"v_mul_lo_u32 v5, v4, {sr(S_T0)}")
    a(f"v_lshl_add_u32 {vr(vX)}, v3, 4, v5")
    a("v_lshrrev_b32 v4, 3, v0")
    a("v_and_b32 v5, 7, v0")
    a("v_bfe_u32 v6, v0, 4, 1")
    a("v_lshlrev_b32 v6, 1, v6")
    a("v_xor_b32 v5, v5, v6")
    for o in range(2):
        a(f"v_xor_b32 v7, {4*o}, v5")
        a(f"s_lshl_b32 {sr(S_T0)}, {sr(S_WAVE)}, 4")
        a(f"s_add_u32 {sr(S_T0)}, {sr(S_T0)}, {8*o}")
        a(f"v_add_u32 v8, {sr(S_T0)}, v4")
        a(f"v_lshlrev_b32 v8, 10, v8")
        a(f"v_lshl_add_u32 v8, v7, 4, v8")
        a(f"s_lshl_b32 {sr(S_T0)}, {sr(S_N0)}, 1")
        a(f"v_add_u32 {vr(vW+o)}, {sr(S_T0)}, v8")
    a("v_lshrrev_b32 v4, 2, v2")
    a("v_and_b32 v5, 3, v2")
    a("v_lshl_add_u32 v6, v3, 3, v4")
    a("v_lshlrev_b32 v6, 7, v6")
    a("v_lshl_add_u32 v6, v5, 3, v6")
    a("v_and_b32 v7, 1, v3")
    a("v_lshrrev_b32 v8, 1, v4")
    a("v_lshl_or_b32 v8, v7, 1, v8")
    for nt in range(NTt):
        a(f"v_xor_b32 v9, {nt}, v8")
        a(f"v_lshl_add_u32 {vr(vT+nt)}, v9, 5, v6")
    for i in range(16):
        a(f"v_mov_b32 {vr(vAcc+i)}, 0")
    a(f"s_lshl_b32 {sr(S_M)}, {sr(S_WAVE)}, 11")
    a("s_waitcnt lgkmcnt(0)")
    make_srd(a, SRD_A, S_WS, WS_H3, S * F * 2)
    make_srd(a, SRD_W, S_W4, 0, F * D * 2)
    make_srd(a, SRD_O, S_OUT, 0, S * D * 2)
    make_srd(a, SRD_R, S_WS, WS_X1, S * D * 2)
    stamp(a, 1)
    for nt in range(NTt):
        a(f"buffer_load_dwordx2 {vr(vRes+2*nt,2)}, {vr(vO)}, {sr(SRD_R,4)}, 0 offen offset:{32*nt}")
    for s in range(-13, 0):
        sw = s + 13
        a(f"s_mov_b32 {sr(S_WOFF)}, 0x{sw*64*w_pitch:x}")
        for o in range(2):
            a(f"s_add_u32 m0, {sr(S_M)}, 0x{sw*slab + o*1024:x}")
            a("s_nop 0")
            a(f"buffer_load_dwordx4 {vr(vW+o)}, {sr(SRD_W,4)}, {sr(S_WOFF)} offen lds")
        sx = s + 7
        if sx >= 0:
            for kk in range(2):
                a(f"buffer_load_dwordx4 {ar(xf(sx,kk),4)}, {vr(vX)}, {sr(SRD_A,4)}, 0 offen offset:{sx*128+kk*64}")
    stamp(a, 2)
    a(f"s_mov_b32 {sr(S_WOFF)}, 0x{13*64*w_pitch:x}")
    a(f"s_mov_b32 {sr(S_XOFF)}, {U*128}")
    a(f"s_mov_b32 {sr(S_IT)}, 0")
    a(f"s_mov_b32 {sr(S_B0)}, {sr(S_M)}")
    a(f"s_add_u32 {sr(S_B1)}, {sr(S_M)}, 0x{U*slab:x}")
    a.label(f"{name}_loop")
    a(f"s_cmp_lg_u32 {sr(S_IT)}, {NIT-1}")
    a(f"s_cbranch_scc1 {name}_notlast")
    a(f"v_mov_b32 {vr(vX)}, 0x80000000")
    a.label(f"{name}_notlast")
    for u in range(U):
        a("s_waitcnt vmcnt(24)")
        a("s_barrier")
        for o in range(2):
            if u == 0:
                a(f"s_add_u32 m0, {sr(S_B1)}, 0x{(U-1)*slab + o*1024:x}")
            else:
                a(f"s_add_u32 m0, {sr(S_B0)}, 0x{(u-1)*slab + o*1024:x}")
            a("s_nop 0")
            a(f"buffer_load_dwordx4 {vr(vW+o)}, {sr(SRD_W,4)}, {sr(S_WOFF)} offen lds")
        a(f"s_add_u32 {sr(S_WOFF)}, {sr(S_WOFF)}, 0x{64*w_pitch:x}")
        n = 0
        for kk in range(2):
            for nt in range(NTt):
                if kk == 1 and nt == 3:
                    a("s_waitcnt lgkmcnt(12)")
                    a(f"v_mfma_f32_16x16x32_bf16 {vr(acc(0),4)}, {vr(wb(0,0),4)}, {ar(xf(u,0),4)}, {vr(acc(0),4)}")
                for h in range(2):
                    off = u * slab + (32 * kk + 4 * h) * wl
                    a(f"ds_read_b64_tr_b16 {vr(wb(kk,nt)+2*h,2)}, {vr(vT+nt)} offset:{off}")
        idx = 0
        for kk in range(2):
            for nt in range(NTt):
                if idx > 0:
                    a(f"s_waitcnt lgkmcnt({2*(7-idx)})")
                    a(f"v_mfma_f32_16x16x32_bf16 {vr(acc(nt),4)}, {vr(wb(kk,nt),4)}, {ar(xf(u,kk),4)}, {vr(acc(nt),4)}")
                idx += 1
        for kk in range(2):
            a(f"buffer_load_dwordx4 {ar(xf(u,kk),4)}, {vr(vX)}, {sr(SRD_A,4)}, {sr(S_XOFF)} offen offset:{u*128+kk*64}")
    for nt in range(NTt):
        a(f"v_xor_b32 {vr(vT+nt)}, 0x{U*slab:x}, {vr(vT+nt)}")
    a(f"s_mov_b32 {sr(S_T0)}, {sr(S_B0)}")
    a(f"s_mov_b32 {sr(S_B0)}, {sr(S_B1)}")
    a(f"s_mov_b32 {sr(S_B1)}, {sr(S_T0)}")
    a(f"s_add_u32 {sr(S_XOFF)}, {sr(S_XOFF)}, {U*128}")
    a(f"s_add_u32 {sr(S_IT)}, {sr(S_IT)}, 1")
    a(f"s_cmp_lt_u32 {sr(S_IT)}, {NIT}")
    a(f"s_cbranch_scc1 {name}_loop")
    stamp(a, 4)
    a("s_nop 7")
    a("s_nop 3")
    res_epilogue(a, NTt, vRes, acc, vWb, vO, SRD_O)
    stamp(a, 5)
    stamp_flush(a, kidx, 6, 4)
    a.label(f"{name}_end")
    a("s_endpgm")
    descriptor(a, name, nv, na)
    return 14 * slab


def main(out, stampflag=False):
    global STAMP
    STAMP = stampflag
    a = Asm()
    l1 = upfront_kernel(a, "k1_kernel", 0, True, 1, 4, S_X, 0, S_W1, 1024, D * D * 2, WS_G, 1024, S * D * 2, True, False)
    l2 = upfront_kernel(a, "k2_kernel", 1, False, 1, 4, S_WS, WS_G, S_W2, 1024, D * D * 2, WS_X1, 1024, S * D * 2, False, True)
    l3 = upfront_kernel(a, "k3_kernel", 2, True, 2, 7, S_WS, WS_X1, S_W3, F * 2, D * F * 2, WS_H3, F * 2, S * F * 2, False, False)
    l4 = ring_kernel(a, "k4_kernel", 3)
    hdr = open("standalone__mixer_s_mlp__prompt.s.ref").read().split("; Override")[0]
    hdr += f"; @launch kernel=k1_kernel grid=(256,1,1) block=(256,1,1) lds={l1}\n"
    hdr += f"; @launch kernel=k2_kernel grid=(256,1,1) block=(256,1,1) lds={l2}\n"
    hdr += f"; @launch kernel=k3_kernel grid=(256,1,1) block=(256,1,1) lds={l3}\n"
    hdr += f"; @launch kernel=k4_kernel grid=(256,1,1) block=(256,1,1) lds={l4}\n"
    hdr += '.amdgcn_target "amdgcn-amd-amdhsa--gfx950"\n'
    open(out, "w").write(hdr + a.text())


if __name__ == "__main__":
    out = sys.argv[1] if len(sys.argv) > 1 else "standalone__mixer_s_mlp__prompt.s"
    main(out, len(sys.argv) > 2 and sys.argv[2] == "stamp")
```
